```python
import torch

def _softmax(x, axis=-1):
    return torch.softmax(x, dim=axis)

def _gelu(x):
    return torch.nn.functional.gelu(x, approximate='tanh')

def _silu(x):
    return torch.nn.functional.silu(x)

def _sigmoid(x):
    return torch.sigmoid(x)

def _layernorm(x, axis=-1, eps=1e-05):
    m = x.mean(dim=axis, keepdim=True)
    v = x.var(dim=axis, keepdim=True, unbiased=False)
    return (x - m) / torch.sqrt(v + eps)

def _scatter_add(tgt, idx, src, axis=0):
    return tgt.clone().index_add_(axis, idx, src)

def _segment_sum(src, seg, n):
    out = torch.zeros((n,) + src.shape[1:], dtype=src.dtype)
    return out.index_add_(0, seg, src)

def _pad(x, pw):
    flat = tuple((v for pair in reversed(pw) for v in pair))
    return torch.nn.functional.pad(x, flat)
kernel_name = 'adaLN_cond__ssm_conv_s4__mixer_gmlp__prompt'

def setup_inputs():

    _w = lambda a: (lambda t: t.to(torch.bfloat16) if t.is_floating_point() else t)(torch.as_tensor(a))

    def _A_setup():
        B, L, D, N = (1, 2048, 640, 128)
        A_re = -(lambda _x: torch.exp(torch.as_tensor(_x)))((lambda *s: torch.randn(*s, dtype=torch.bfloat16) * 3.2)(D, N))
        A_im = torch.pi * (lambda *s: torch.randn(*s, dtype=torch.bfloat16) * 0.1)(D, N)
        B_re = (lambda *s: torch.randn(*s, dtype=torch.bfloat16) * 0.2)(D, N)
        B_im = (lambda *s: torch.randn(*s, dtype=torch.bfloat16) * 0.2)(D, N)
        C_re = (lambda *s: torch.randn(*s, dtype=torch.bfloat16) * 0.2)(D, N)
        C_im = (lambda *s: torch.randn(*s, dtype=torch.bfloat16) * 0.2)(D, N)
        log_dt = (lambda *s: torch.randn(*s, dtype=torch.bfloat16) * 0.1)(D) * 0.5 - 4.0
        Dskip = (lambda *s: torch.randn(*s, dtype=torch.bfloat16) * 0.1)(D)
        return {'u': _w((lambda *s: torch.randn(*s, dtype=torch.bfloat16) * 0.05)(B, L, D)), 'A_re': _w(A_re), 'A_im': _w(A_im), 'B_re': _w(B_re), 'B_im': _w(B_im), 'C_re': _w(C_re), 'C_im': _w(C_im), 'log_dt': _w(log_dt), 'Dskip': _w(Dskip)}
    _A_in = _A_setup()

    def _B_setup():
        B, S, D, F = (1, 2048, 640, 1728)
        Fh = F // 2
        return {'x': _w((lambda *s: torch.randn(*s, dtype=torch.bfloat16) * 0.05)(B, S, D)), 'w_in': _w((lambda *s: torch.randn(*s, dtype=torch.bfloat16) * 0.2)(D, 2 * Fh)), 'w_sp': _w(0.01 * (lambda *s: torch.randn(*s, dtype=torch.bfloat16) * 0.2)(S, S)), 'b_sp': _w(1.0 + 0.01 * (lambda *s: torch.randn(*s, dtype=torch.bfloat16) * 0.05)(S)), 'w_out': _w((lambda *s: torch.randn(*s, dtype=torch.bfloat16) * 0.05)(Fh, D))}
    _B_in = _B_setup()
    return {'A_u': _A_in['u'], 'A_A_re': _A_in['A_re'], 'A_A_im': _A_in['A_im'], 'A_B_re': _A_in['B_re'], 'A_B_im': _A_in['B_im'], 'A_C_re': _A_in['C_re'], 'A_C_im': _A_in['C_im'], 'A_log_dt': _A_in['log_dt'], 'A_Dskip': _A_in['Dskip'], 'B_x': _B_in['x'], 'B_w_in': _B_in['w_in'], 'B_w_sp': _B_in['w_sp'], 'B_b_sp': _B_in['b_sp'], 'B_w_out': _B_in['w_out'], 'c': _w((lambda *s: torch.randn(*s, dtype=torch.bfloat16) * 0.1)(1, 640) * 8.0), 'w_mod': _w((lambda *s: torch.randn(*s, dtype=torch.bfloat16) * 0.1)(640, 6 * 640) * 640 ** (-0.5) * 8.0)}

def reference(A_u, A_A_re, A_A_im, A_B_re, A_B_im, A_C_re, A_C_im, A_log_dt, A_Dskip, B_x, B_w_in, B_w_sp, B_b_sp, B_w_out, c, w_mod):

    def _A_ref(u, A_re, A_im, B_re, B_im, C_re, C_im, log_dt, Dskip):
        Bsz, L, D = u.shape
        dt = torch.exp(log_dt)[:, None]
        A = A_re + 1j * A_im
        Bc = B_re + 1j * B_im
        Cc = C_re + 1j * C_im
        logdA = dt * A
        dB = dt * Bc
        l = (lambda x, dt: x.to(dt))(torch.arange(L), A_re.dtype)
        P = torch.exp(logdA[:, :, None] * l[None, None, :])
        K = torch.einsum('dn,dnl,dn->dl', Cc, P, dB).real
        L2 = 2 * L
        Kp = _pad(K, ((0, 0), (0, L)))
        up = (lambda x, *d: x.permute(*d))(u, 0, 2, 1)
        up = _pad(up, ((0, 0), (0, 0), (0, L)))
        Kf = (lambda x, axes=(-2, -1): torch.fft.rfft2(x.float(), dim=axes))(Kp[:, None, :], axes=(-2, -1))
        Uf = (lambda x, axes=(-2, -1): torch.fft.rfft2(x.float(), dim=axes))(up[:, :, None, :], axes=(-2, -1))
        Yf = Uf * Kf[None, :, :, :]
        y = (lambda x, s, axes=(-2, -1): torch.fft.irfft2(x, s=s, dim=axes).to(torch.bfloat16))(Yf, (1, L2), axes=(-2, -1))[:, :, 0, :L]
        y = (lambda x, *d: x.permute(*d))(y, 0, 2, 1) + u * Dskip[None, None, :]
        return y

    def _B_ref(x, w_in, w_sp, b_sp, w_out):
        B, S, D = x.shape
        F = w_in.shape[-1]
        Fh = F // 2
        z = _gelu(torch.einsum('bsd,df->bsf', x, w_in))
        z1 = z[..., :Fh].clone()
        z2 = _layernorm(z[..., Fh:], axis=-1)
        g = torch.einsum('ts,bsf->btf', w_sp, z2) + b_sp[None, :, None]
        return torch.einsum('bsf,fd->bsd', z1 * g, w_out)
    x = A_u
    mod = (_silu(c) @ w_mod).reshape(c.shape[0], 6, 1, -1)
    sa, ca, ga, sb, cb, gb = (mod[:, 0].clone(), mod[:, 1].clone(), mod[:, 2].clone(), mod[:, 3].clone(), mod[:, 4].clone(), mod[:, 5].clone())
    h = _layernorm(x, axis=-1) * (1 + ca) + sa
    x = x + ga * _A_ref(h, A_A_re, A_A_im, A_B_re, A_B_im, A_C_re, A_C_im, A_log_dt, A_Dskip)
    h = _layernorm(x, axis=-1) * (1 + cb) + sb
    x = x + gb * _B_ref(h, B_w_in, B_w_sp, B_b_sp, B_w_out)
    return x
```

```python
import re

TRANS = ('v_exp_f32', 'v_log_f32', 'v_rcp_f32', 'v_rsq_f32', 'v_sqrt_f32', 'v_sin_f32', 'v_cos_f32', 'v_rcp_iflag_f32')


def V(i, n=1):
    return f"v{i}" if n == 1 else f"v[{i}:{i + n - 1}]"


def S(i, n=1):
    return f"s{i}" if n == 1 else f"s[{i}:{i + n - 1}]"


def A(i, n=1):
    return f"a{i}" if n == 1 else f"a[{i}:{i + n - 1}]"


_reg_re = re.compile(r'^(-)?(\|)?(abs\()?([vsa])(?:(\d+)|\[(\d+):(\d+)\])\)?\|?$')


def regs_of(tok):
    tok = tok.strip()
    if tok in ('vcc', 'exec', 'm0', 'scc'):
        return [tok]
    if tok in ('vcc_lo', 'vcc_hi'):
        return ['vcc']
    if tok in ('exec_lo', 'exec_hi'):
        return ['exec']
    m = _reg_re.match(tok)
    if not m:
        return []
    f = m.group(4)
    if m.group(5) is not None:
        return [(f, int(m.group(5)))]
    return [(f, i) for i in range(int(m.group(6)), int(m.group(7)) + 1)]


class Ins:
    __slots__ = ('text', 'op', 'ops', 'mods', 'w', 'r', 'kind', 'idx', 'pre_nop', 'pre_vm', 'pre_lgkm', 'comment')

    def __init__(self, text):
        self.comment = ''
        if ';' in text:
            text, self.comment = text.split(';', 1)
        text = text.strip()
        self.text = text
        parts = text.split(None, 1)
        self.op = parts[0]
        rest = parts[1] if len(parts) > 1 else ''
        toks, depth, cur = [], 0, ''
        for ch in rest:
            if ch in '[(':
                depth += 1
            if ch in '])':
                depth -= 1
            if ch == ',' and depth == 0:
                toks.append(cur.strip())
                cur = ''
            else:
                cur += ch
        if cur.strip():
            toks.append(cur.strip())
        self.mods = ''
        if toks:
            last = toks[-1].split(None, 1)
            toks[-1] = last[0]
            if len(last) > 1:
                self.mods = last[1]
        self.ops = toks
        self.pre_nop = 0
        self.pre_vm = None
        self.pre_lgkm = None
        self.classify()

    def classify(self):
        op, o = self.op, self.ops
        R = lambda i: regs_of(o[i]) if i < len(o) else []
        allr = [x for t in o for x in regs_of(t)]
        w, r = [], []
        base = op
        for suf in ('_e32', '_e64', '_dpp', '_sdwa'):
            if base.endswith(suf):
                base = base[:-len(suf)]
        kind = 'other'
        if op.endswith(':'):
            kind = 'label'
        elif op in ('s_waitcnt', 's_nop', 's_barrier', 's_endpgm', 's_setprio', 's_sleep', 's_branch'):
            kind = op
        elif op.startswith('s_cbranch'):
            kind = 'branch'
            r = ['scc'] if 'scc' in op else (['vcc'] if 'vcc' in op else ['exec'])
        elif op.startswith('s_cmp') or op.startswith('s_bitcmp'):
            kind = 'salu'
            r = allr
            w = ['scc']
        elif op.startswith('s_load') or op.startswith('s_buffer_load') or op.startswith('s_memtime') or op.startswith('s_memrealtime'):
            kind = 'smem'
            w = R(0)
            r = [x for t in o[1:] for x in regs_of(t)]
        elif op.startswith('s_'):
            kind = 'salu'
            w = R(0) + ['scc']
            r = [x for t in o[1:] for x in regs_of(t)]
            if 'saveexec' in op:
                w += ['exec']
                r += ['exec']
            if op in ('s_addc_u32', 's_subb_u32', 's_cselect_b32', 's_cselect_b64'):
                r += ['scc']
            if op in ('s_addk_i32', 's_mulk_i32'):
                r += R(0)
        elif op.startswith('v_mfma'):
            kind = 'mfma'
            w = R(0)
            r = R(1) + R(2) + R(3)
        elif op.startswith('v_'):
            kind = 'valu'
            if base.startswith('v_cmp'):
                w = R(0) + (['exec'] if base.startswith('v_cmpx') else [])
                r = [x for t in o[1:] for x in regs_of(t)]
            elif base in ('v_add_co_u32', 'v_sub_co_u32', 'v_subrev_co_u32', 'v_addc_co_u32', 'v_subb_co_u32', 'v_mad_u64_u32'):
                w = R(0) + R(1)
                r = [x for t in o[2:] for x in regs_of(t)]
            elif 'permlane' in base and 'swap' in base or base == 'v_swap_b32':
                w = R(0) + R(1)
                r = R(0) + R(1)
            else:
                w = R(0)
                r = [x for t in o[1:] for x in regs_of(t)]
                if base in ('v_fmac_f32', 'v_dot2c_f32_bf16', 'v_pk_fmac_f16', 'v_writelane_b32') or op.endswith('_dpp') or op.endswith('_sdwa'):
                    r += R(0)
        elif op.startswith('ds_'):
            kind = 'ds'
            if op.startswith('ds_read') or op.startswith('ds_bpermute') or op.startswith('ds_permute') or op.startswith('ds_swizzle'):
                w = R(0)
                r = [x for t in o[1:] for x in regs_of(t)]
                if 'd16' in op:
                    r += R(0)
            else:
                r = allr
        elif op.startswith('buffer_') or op.startswith('global_'):
            kind = 'vmem'
            lds = (' lds' in (' ' + self.mods)) or '_lds_' in op
            if lds:
                r = allr + ['m0']
            elif '_load' in op:
                w = R(0)
                r = [x for t in o[1:] for x in regs_of(t)]
                if 'd16' in op:
                    r += R(0)
            elif 'atomic' in op and ('sc0' in self.mods.split()):
                w = R(0)
                r = allr
            else:
                r = allr
        else:
            raise ValueError('unknown op ' + self.text)
        self.kind, self.w, self.r = kind, set(w), set(r)

    def is_trans(self):
        b = self.op.replace('_e32', '').replace('_e64', '')
        return b in TRANS

    def mfma_passes(self):
        if '32x32x16' in self.op or '32x32x8' in self.op:
            return 8
        if '16x16x32' in self.op or '16x16x16' in self.op:
            return 4
        if '16x16x4_f32' in self.op:
            return 8
        if '32x32x2_f32' in self.op:
            return 16
        raise ValueError(self.op)

    def wide_store(self):
        return self.kind == 'vmem' and ('store_dwordx4' in self.op or 'store_dwordx3' in self.op)


class Kernel:
    def __init__(self, name):
        self.name = name
        self.items = []
        self.loops = []
        self._loop_stack = []
        self.resets = set()
        self.vtop = 0
        self.stop = 0
        self.atop = 0
        self.lab = 0

    def __call__(self, text):
        for line in text.strip().split('\n'):
            line = line.strip()
            if not line or line.startswith(';'):
                continue
            ins = Ins(line)
            ins.idx = len(self.items)
            self.items.append(ins)

    def label(self, name):
        self(name + ':')

    def newlabel(self, base='L'):
        self.lab += 1
        return f"{self.name}_{base}{self.lab}"

    def loop_begin(self, name):
        self._loop_stack.append(len(self.items))
        self.label(name)

    def loop_end(self):
        st = self._loop_stack.pop()
        self.loops.append((st, len(self.items) - 1))

    def drain(self):
        self('s_waitcnt vmcnt(0) lgkmcnt(0)')

    def section(self, label):
        self.label(label)
        self.resets.add(len(self.items) - 1)
        self('s_nop 7')
        self('s_nop 7')

    def trace(self):
        loops = sorted(self.loops)

        def expand(lo, hi, inner):
            out = []
            i = lo
            while i <= hi:
                lp = [l for l in inner if l[0] == i]
                if lp:
                    l = max(lp, key=lambda x: x[1])
                    sub = [x for x in inner if x != l and x[0] >= l[0] and x[1] <= l[1]]
                    body = expand(l[0], l[1], sub)
                    out += body + body + body
                    i = l[1] + 1
                else:
                    out.append(i)
                    i += 1
            return out
        return expand(0, len(self.items) - 1, loops)

    def analyze_waits(self):
        tr = self.trace()
        changed = True
        it = 0
        while changed:
            changed = False
            it += 1
            vm, lg = [], []
            for idx in tr:
                ins = self.items[idx]
                if idx in self.resets:
                    vm, lg = [], []
                need_vm, need_lg = ins.pre_vm, ins.pre_lgkm
                touched = ins.r | ins.w
                if ins.kind not in ('label', 's_waitcnt', 's_nop'):
                    for q, p in enumerate(vm):
                        if p.w & touched:
                            n = len(vm) - 1 - q
                            if need_vm is None or n < need_vm:
                                need_vm = n
                    for q, p in enumerate(lg):
                        if p.w & touched:
                            n = len(lg) - 1 - q
                            if any(x.kind == 'smem' for x in lg):
                                n = 0
                            if need_lg is None or n < need_lg:
                                need_lg = n
                if need_vm is not None and need_vm > 63:
                    need_vm = 63
                if need_lg is not None and need_lg > 15:
                    need_lg = 15
                if need_vm != ins.pre_vm or need_lg != ins.pre_lgkm:
                    ins.pre_vm, ins.pre_lgkm = need_vm, need_lg
                    changed = True
                if need_vm is not None:
                    vm = vm[len(vm) - need_vm:] if need_vm < len(vm) else vm
                    if need_vm == 0:
                        vm = []
                if need_lg is not None:
                    lg = lg[len(lg) - need_lg:] if need_lg < len(lg) else lg
                    if need_lg == 0:
                        lg = []
                if ins.kind == 's_waitcnt':
                    m = re.search(r'vmcnt\((\d+)\)', ins.text)
                    if m:
                        n = int(m.group(1))
                        vm = vm[len(vm) - n:] if 0 < n < len(vm) else ([] if n == 0 else vm)
                    m = re.search(r'lgkmcnt\((\d+)\)', ins.text)
                    if m:
                        n = int(m.group(1))
                        if n == 0:
                            lg = []
                        elif n < len(lg) and not any(x.kind == 'smem' for x in lg):
                            lg = lg[len(lg) - n:]
                elif ins.kind == 'vmem':
                    vm.append(ins)
                    if len(vm) > 63:
                        pass
                elif ins.kind in ('ds', 'smem'):
                    lg.append(ins)
            assert it < 20

    def hazard_need(self, p, c):
        need = 0
        pw, pr, cr, cw = p.w, p.r, c.r, c.w
        vg = lambda s: {x for x in s if isinstance(x, tuple) and x[0] in 'va'}
        sg = lambda s: {x for x in s if (isinstance(x, tuple) and x[0] == 's') or x == 'vcc'}
        if p.kind == 'valu':
            if c.kind == 'mfma' and vg(pw) & cr:
                need = max(need, 2)
            if p.is_trans() and vg(pw) & (cr | cw) and not c.is_trans_like():
                need = max(need, 1)
            if p.is_trans() and vg(pw) & cr:
                need = max(need, 1)
            if sg(pw) & cr:
                if c.kind == 'valu':
                    need = max(need, 4 if ('readlane' in c.op or 'writelane' in c.op) else 2)
                if c.kind == 'vmem':
                    need = max(need, 5)
                if c.kind == 'salu' or c.kind == 'smem':
                    need = max(need, 1)
            if vg(pw) & cr:
                if c.op.endswith('_dpp') or 'permlane' in c.op:
                    need = max(need, 2)
                if 'readlane' in c.op or 'readfirstlane' in c.op:
                    need = max(need, 1)
            if 'exec' in pw:
                need = max(need, 5)
            if ('sdwa' in p.op or 'op_sel' in p.mods) and vg(pw) & (cr | cw):
                need = max(need, 1)
            if p.op.startswith('v_dot') and vg(pw) & (cr | cw):
                same_c = (c.op == p.op) and not (vg(pw) & set(regs_of(c.ops[1]) + regs_of(c.ops[2])))
                if not same_c:
                    need = max(need, 3)
        if p.kind == 'mfma':
            ps = p.mfma_passes()
            tab_ab = {2: 5, 4: 8, 8: 12, 16: 20}[ps]
            tab_c = {2: 4, 4: 6, 8: 10, 16: 18}[ps]
            tab_war = {2: 1, 4: 3, 8: 7, 16: 15}[ps]
            if c.kind == 'mfma':
                ab = set(regs_of(c.ops[1]) + regs_of(c.ops[2]))
                cc = set(regs_of(c.ops[3]))
                if pw & ab:
                    need = max(need, tab_ab)
                if pw & cc:
                    if not (pw == cc and c.op == p.op):
                        need = max(need, tab_c)
                elif pw & cw:
                    need = max(need, tab_ab)
            elif c.kind in ('valu', 'vmem', 'ds'):
                if pw & (cr | cw):
                    need = max(need, tab_ab)
                pc = set(regs_of(p.ops[3]))
                if pc & cw:
                    need = max(need, tab_war)
        if p.wide_store() or (p.kind == 'ds' and False):
            data = set(regs_of(p.ops[0])) if p.op.startswith('buffer') else set(regs_of(p.ops[1]))
            if data & cw:
                need = max(need, 2)
        if p.kind == 'salu' and 'm0' in pw and 'm0' in cr:
            need = max(need, 1)
        return need

    def analyze_hazards(self):
        tr = self.trace()
        WIN = 24
        changed = True
        while changed:
            changed = False
            hist = []
            pos = 0
            for idx in tr:
                ins = self.items[idx]
                if idx in self.resets:
                    hist = []
                if ins.kind == 'label':
                    continue
                extra = ins.pre_nop + (1 if (ins.pre_vm is not None or ins.pre_lgkm is not None) else 0)
                pos += extra
                need_add = 0
                for (p, ppos) in hist:
                    dist = pos - ppos
                    if dist >= WIN:
                        continue
                    n = self.hazard_need(p, ins)
                    if n > dist:
                        need_add = max(need_add, n - dist)
                if need_add:
                    ins.pre_nop += need_add
                    pos += need_add
                    changed = True
                hist.append((ins, pos + 1 - 1 + 0))
                adv = 1
                if ins.kind == 's_nop':
                    adv = int(ins.ops[0], 0) + 1
                hist[-1] = (ins, pos + 1)
                pos += adv
                if len(hist) > 40:
                    hist = hist[-40:]

    def finalize(self):
        self.analyze_waits()
        self.analyze_hazards()
        out = []
        for ins in self.items:
            for x in ins.r | ins.w:
                if isinstance(x, tuple):
                    if x[0] == 'v':
                        self.vtop = max(self.vtop, x[1] + 1)
                    elif x[0] == 's':
                        self.stop = max(self.stop, x[1] + 1)
                    else:
                        self.atop = max(self.atop, x[1] + 1)
            if ins.pre_vm is not None or ins.pre_lgkm is not None:
                s = 's_waitcnt'
                if ins.pre_vm is not None:
                    s += f' vmcnt({ins.pre_vm})'
                if ins.pre_lgkm is not None:
                    s += f' lgkmcnt({ins.pre_lgkm})'
                out.append('    ' + s)
            n = ins.pre_nop
            while n > 0:
                k = min(n, 16)
                out.append(f'    s_nop {k - 1}')
                n -= k
            if ins.kind == 'label':
                out.append(ins.text)
            else:
                out.append('    ' + ins.text)
        return out

    def text(self):
        body = self.finalize()
        hdr = [f'.globl {self.name}', '.p2align 8', f'.type {self.name},@function', f'{self.name}:']
        return '\n'.join(hdr + body) + '\n'

    def descriptor(self):
        acc = (max(self.vtop, 1) + 3) // 4 * 4
        nfv = acc + self.atop if self.atop else max(self.vtop, 1)
        assert self.vtop <= 256 and self.atop <= 256 and nfv <= 512, (self.vtop, self.atop)
        assert self.stop <= 102
        return f""".p2align 6
.amdhsa_kernel {self.name}
  .amdhsa_next_free_vgpr {nfv}
  .amdhsa_next_free_sgpr {max(self.stop, 8)}
  .amdhsa_accum_offset {acc}
  .amdhsa_group_segment_fixed_size 0
  .amdhsa_kernarg_size 152
  .amdhsa_user_sgpr_count 2
  .amdhsa_user_sgpr_kernarg_segment_ptr 1
  .amdhsa_system_sgpr_workgroup_id_x 1
  .amdhsa_float_denorm_mode_32 3
  .amdhsa_float_denorm_mode_16_64 3
.end_amdhsa_kernel
"""


Ins.is_trans_like = lambda self: self.kind == 'valu' and self.is_trans()
```

```python
import struct
from asmgen import Kernel, V, S, A

KA = dict(x=0, a_re=8, a_im=16, b_re=24, b_im=32, c_re=40, c_im=48, log_dt=56, dskip=64, b_x=72,
          w_in=80, w_sp=88, b_sp=96, w_out=104, c=112, w_mod=120, out=128, dbg=136, ws=144)

L, D, NM, F, FH = 2048, 640, 128, 1728, 864

_off = 0
WS = {}


def _alloc(name, nbytes):
    global _off
    WS[name] = (_off, nbytes)
    _off += (nbytes + 4095) // 4096 * 4096


GSTRIDE = 4128
_alloc('XI', D * L * 2)
_alloc('ST1', L * 4)
_alloc('G', D * GSTRIDE)
_alloc('MODP', 3840 * 16 * 4)
_alloc('WOF', 27 * 40 * 1024)
_alloc('WPF', 108 * 20 * 1024)
_alloc('C12', 4 * 2 * F * 4)
_alloc('X1T', D * L * 2)
_alloc('Z1F', 27 * 128 * 1024)
_alloc('Z2F', 54 * 64 * 1024)
_alloc('ST2', L * 2 * 4)
_alloc('PF', 27 * 128 * 1024)


def f32bits(x):
    return struct.unpack('<I', struct.pack('<f', x))[0]


def fhex(x):
    return '0x%08x' % f32bits(x)


LOG2E = 1.4426950408889634
INV2PI = 0.15915494309189535


def load_ptr(k, sdst, name):
    k(f's_load_dwordx2 {S(sdst, 2)}, s[0:1], {KA[name]}')


def srd(k, sd, sbase, off, nbytes):
    assert sd % 4 == 0
    if off:
        k(f's_add_u32 {S(sd)}, {S(sbase)}, {off}')
        k(f's_addc_u32 {S(sd + 1)}, {S(sbase + 1)}, 0')
        k(f's_and_b32 {S(sd + 1)}, {S(sd + 1)}, 0xffff')
    else:
        k(f's_mov_b32 {S(sd)}, {S(sbase)}')
        k(f's_and_b32 {S(sd + 1)}, {S(sbase + 1)}, 0xffff')
    k(f's_mov_b32 {S(sd + 2)}, {nbytes}')
    k(f's_mov_b32 {S(sd + 3)}, 0x20000')


def srd_ws(k, sd, sws, name):
    srd(k, sd, sws, WS[name][0], WS[name][1])


def round_bf16(k, dst, src):
    k(f'v_cvt_pk_bf16_f32 {dst}, {src}, {src}')
    k(f'v_lshlrev_b32 {dst}, 16, {dst}')


def unpack_lo(k, dst, src):
    k(f'v_lshlrev_b32 {dst}, 16, {src}')


def unpack_hi(k, dst, src):
    k(f'v_and_b32 {dst}, 0xffff0000, {src}')


def wave_id(k, sdst, vtmp):
    k(f'v_lshrrev_b32 {V(vtmp)}, 6, v0')
    k(f'v_readfirstlane_b32 {S(sdst)}, {V(vtmp)}')


def exp_accurate(k, dst, x, t1, t2, sc):
    c_hi = struct.unpack('<f', struct.pack('<f', LOG2E))[0]
    c_lo = LOG2E - c_hi
    k(f'v_mul_f32 {t1}, {fhex(c_hi)}, {x}')
    k(f's_mov_b32 {S(sc)}, {fhex(c_hi)}')
    k(f'v_fma_f32 {t2}, {x}, {S(sc)}, -{t1}')
    k(f'v_fmamk_f32 {t2}, {x}, {fhex(c_lo)}, {t2}')
    k(f'v_exp_f32 {dst}, {t1}')
    k(f'v_mul_f32 {t2}, {fhex(0.6931471805599453)}, {t2}')
    k(f'v_fmac_f32 {dst}, {dst}, {t2}')


def mod_value(k, vdst, sbase_modp, col_sgpr, stmp):
    raise NotImplementedError


import os
DIAG = int(os.environ.get('DIAG', '0'))
DIAG_S0 = 84


def stamp(k, idx, real=False):
    if not DIAG:
        return
    op = 's_memrealtime' if real else 's_memtime'
    k(f'{op} {S(DIAG_S0 + 2 * idx, 2)}')


def stamp_flush(k, n, wg):
    if not DIAG:
        return
    lab = k.newlabel('nostamp')
    k('s_waitcnt vmcnt(0) lgkmcnt(0)')
    k(f's_cmp_lg_u32 s2, {wg}')
    k(f's_cbranch_scc1 {lab}')
    k(f's_load_dwordx2 s[28:29], s[0:1], {KA["dbg"]}')
    k('s_mov_b64 exec, -1')
    k('v_cmp_eq_u32 vcc, 0, v0')
    k('s_and_b64 exec, exec, vcc')
    k(f's_cbranch_execz {lab}')
    k('v_mov_b32 v1, 0')
    k('s_waitcnt lgkmcnt(0)')
    for i in range(n):
        k(f'v_mov_b32 v2, {S(DIAG_S0 + 2 * i)}')
        k(f'v_mov_b32 v3, {S(DIAG_S0 + 2 * i + 1)}')
        k(f'global_store_dwordx2 v1, v[2:3], s[28:29] offset:{8 * i}')
        k('s_nop 1')
    k.label(lab)
```

```python
from gen_common import *

N_T2 = 128
N_T1 = 64
N_T5 = 27
N_Z = 1
N_KG = 640
B_T2 = 0
B_T1 = B_T2 + N_T2
B_T5 = B_T1 + N_T1
B_Z = B_T5 + N_T5
B_KG = B_Z + N_Z
K0_GRID = B_KG + N_KG
TR_RS = 1312
K0_LDS = 32 * TR_RS


def transpose_tile(k, mode):
    vr, vj, voff, vl = 1, 2, 3, 4
    DATA = 8
    k(f'v_lshrrev_b32 {V(vr)}, 3, v0')
    k(f'v_and_b32 {V(vj)}, 7, v0')
    k(f's_lshl_b32 s4, s3, 5')
    k(f'v_add_u32 {V(voff)}, s4, {V(vr)}')
    k(f'v_mul_u32_u24 {V(voff)}, 1280, {V(voff)}')
    k(f'v_lshl_add_u32 {V(voff)}, {V(vj)}, 4, {V(voff)}')
    for i in range(10):
        k(f'buffer_load_dwordx4 {V(DATA + 4 * i, 4)}, {V(voff)}, s[8:11], 0 offen offset:{128 * i}')
    vw = 5
    k(f'v_mul_u32_u24 {V(vw)}, {TR_RS}, {V(vr)}')
    k(f'v_lshl_add_u32 {V(vw)}, {V(vj)}, 4, {V(vw)}')
    wave_id(k, 5, 6)
    vg, vq, vra = 6, 7, 48
    k(f'v_and_b32 {V(vl)}, 63, v0')
    k(f'v_lshrrev_b32 {V(vq)}, 4, {V(vl)}')
    k(f'v_bfe_u32 {V(vg)}, v0, 2, 2')
    if mode == 't1':
        k(f'v_lshl_add_u32 {V(vg)}, {V(vq)}, 3, {V(vg)}')
        hstep = 4 * TR_RS
    else:
        k(f'v_lshl_add_u32 {V(vg)}, {V(vq)}, 2, {V(vg)}')
        hstep = 16 * TR_RS
    k(f'v_mul_u32_u24 {V(vra)}, {TR_RS}, {V(vg)}')
    k(f'v_and_b32 {V(vg)}, 3, v0')
    k(f'v_lshl_add_u32 {V(vra)}, {V(vg)}, 3, {V(vra)}')
    k(f's_mul_i32 s6, s5, 320')
    k(f'v_add_u32 {V(vra)}, s6, {V(vra)}')
    vso = 49
    k(f'v_and_b32 {V(vg)}, 15, v0')
    if mode == 't1':
        k(f'v_lshrrev_b32 {V(vso)}, 2, {V(vg)}')
        k(f'v_lshlrev_b32 {V(vso)}, 14, {V(vso)}')
        k(f'v_and_b32 {V(vg)}, 3, v0')
        k(f'v_lshl_add_u32 {V(vso)}, {V(vg)}, 4, {V(vso)}')
        k(f'v_lshl_add_u32 {V(vso)}, {V(vq)}, 6, {V(vso)}')
        k(f's_lshl_b32 s7, s3, 8')
        k(f's_mul_i32 s6, s5, {10 * 65536}')
        k(f's_add_u32 s7, s7, s6')
        sstep = 65536
    else:
        k(f'v_lshlrev_b32 {V(vso)}, 4, {V(vl)}')
        k(f's_mul_i32 s7, s3, {40 * 1024}')
        k(f's_mul_i32 s6, s5, {10 * 1024}')
        k(f's_add_u32 s7, s7, s6')
        sstep = 1024
    if mode == 't1':
        acc = [50, 51, 52, 53]
        for a in acc:
            k(f'v_mov_b32 {V(a)}, 0')
        k(f's_mov_b32 s20, 0x3f803f80')
    for i in range(10):
        k(f'ds_write_b128 {V(vw)}, {V(DATA + 4 * i, 4)} offset:{128 * i}')
        if mode == 't1':
            for e in range(4):
                r = V(DATA + 4 * i + e)
                k(f'v_dot2_f32_bf16 {V(acc[e & 1])}, {r}, s20, {V(acc[e & 1])}')
            for e in range(4):
                r = V(DATA + 4 * i + e)
                k(f'v_dot2_f32_bf16 {V(acc[2 + (e & 1)])}, {r}, {r}, {V(acc[2 + (e & 1)])}')
    if mode == 't1':
        k(f'v_add_f32 {V(50)}, {V(50)}, {V(51)}')
        k(f'v_add_f32 {V(52)}, {V(52)}, {V(53)}')
        for a in (50, 52):
            k(f'v_add_f32_dpp {V(a)}, {V(a)}, {V(a)} quad_perm:[1,0,3,2] row_mask:0xf bank_mask:0xf')
        for a in (50, 52):
            k(f'v_add_f32_dpp {V(a)}, {V(a)}, {V(a)} quad_perm:[2,3,0,1] row_mask:0xf bank_mask:0xf')
        for a in (50, 52):
            k(f'v_add_f32_dpp {V(a)}, {V(a)}, {V(a)} row_half_mirror row_mask:0xf bank_mask:0xf')
        k(f'v_mul_f32 {V(50)}, {fhex(1.0 / 640)}, {V(50)}')
        k(f'v_mul_f32 {V(52)}, {fhex(1.0 / 640)}, {V(52)}')
        k(f'v_fma_f32 {V(52)}, -{V(50)}, {V(50)}, {V(52)}')
        k(f'v_max_f32 {V(52)}, 0, {V(52)}')
        round_bf16(k, V(52), V(52))
        k(f'v_add_f32 {V(52)}, {fhex(1e-5)}, {V(52)}')
        round_bf16(k, V(52), V(52))
        k(f'v_sqrt_f32 {V(52)}, {V(52)}')
        k(f'v_cvt_pk_bf16_f32 {V(51)}, {V(50)}, {V(52)}')
        k(f'v_add_u32 {V(53)}, s4, {V(vr)}')
        k(f'v_lshlrev_b32 {V(53)}, 2, {V(53)}')
        k(f'buffer_store_dword {V(51)}, {V(53)}, s[16:19], 0 offen')
    k('s_waitcnt lgkmcnt(0)')
    k('s_barrier')
    for i in range(10):
        k(f'ds_read_b64_tr_b16 {V(DATA + 4 * i, 2)}, {V(vra)} offset:{32 * i}')
        k(f'ds_read_b64_tr_b16 {V(DATA + 4 * i + 2, 2)}, {V(vra)} offset:{32 * i + hstep}')
    for i in range(10):
        k(f'buffer_store_dwordx4 {V(DATA + 4 * i, 4)}, {V(vso)}, s[12:15], s7 offen')
        if i < 9:
            k(f's_add_u32 s7, s7, {sstep}')
    k('s_endpgm')


def role_mod(k):
    wave_id(k, 5, 1)
    k('s_and_b32 s6, s3, 7')
    k('s_lshr_b32 s7, s3, 3')
    k('s_mul_i32 s20, s7, 40')
    k('s_mul_i32 s21, s5, 10')
    k('s_add_u32 s20, s20, s21')
    k('v_and_b32 v1, 63, v0')
    k('v_min_u32 v2, 9, v1')
    k('v_add_u32 v2, s20, v2')
    k('v_lshlrev_b32 v2, 1, v2')
    k('buffer_load_ushort v3, v2, s[16:19], 0 offen')
    k('v_min_u32 v4, 59, v1')
    k('v_lshlrev_b32 v4, 4, v4')
    k('s_mul_i32 s21, s6, 960')
    k('v_add_u32 v4, s21, v4')
    k('s_mul_i32 s22, s20, 7680')
    DATA = 8
    for i in range(10):
        k(f'buffer_load_dwordx4 {V(DATA + 4 * i, 4)}, v4, s[8:11], s22 offen')
        if i < 9:
            k('s_add_u32 s22, s22, 7680')
    k('v_lshlrev_b32 v3, 16, v3')
    k(f'v_mul_f32 v5, {fhex(-LOG2E)}, v3')
    k('v_exp_f32 v5, v5')
    k('v_add_f32 v5, 1.0, v5')
    k('v_rcp_f32 v5, v5')
    k('v_mul_f32 v5, v3, v5')
    round_bf16(k, 'v5', 'v5')
    for i in range(10):
        k(f'v_readlane_b32 {S(24 + i)}, v5, {i}')
    ACC = 48
    for e in range(8):
        k(f'v_mov_b32 {V(ACC + e)}, 0')
    for i in range(10):
        for e in range(4):
            r = V(DATA + 4 * i + e)
            unpack_lo(k, 'v6', r)
            unpack_hi(k, 'v7', r)
            k(f'v_fmac_f32 {V(ACC + 2 * e)}, {S(24 + i)}, v6')
            k(f'v_fmac_f32 {V(ACC + 2 * e + 1)}, {S(24 + i)}, v7')
    k('v_lshlrev_b32 v2, 5, v0')
    k(f'ds_write_b128 v2, {V(ACC, 4)}')
    k(f'ds_write_b128 v2, {V(ACC + 4, 4)} offset:16')
    k('s_waitcnt lgkmcnt(0)')
    k('s_barrier')
    k('v_lshlrev_b32 v2, 3, v0')
    for w in range(4):
        k(f'ds_read_b64 {V(8 + 2 * w, 2)}, v2 offset:{2048 * w}')
    k('v_add_f32 v8, v8, v10')
    k('v_add_f32 v9, v9, v11')
    k('v_add_f32 v12, v12, v14')
    k('v_add_f32 v13, v13, v15')
    k('v_add_f32 v8, v8, v12')
    k('v_add_f32 v9, v9, v13')
    k('s_mul_i32 s21, s6, 480')
    k('v_lshl_add_u32 v2, v0, 1, s21')
    k('v_lshlrev_b32 v2, 6, v2')
    k('s_lshl_b32 s22, s7, 2')
    k('v_cmp_gt_u32 vcc, 240, v0')
    k('s_and_saveexec_b64 s[24:25], vcc')
    k('buffer_store_dword v8, v2, s[12:15], s22 offen')
    k('buffer_store_dword v9, v2, s[12:15], s22 offen offset:64')
    k('s_endpgm')


def role_zero(k):
    for e in range(4):
        k(f'v_mov_b32 {V(4 + e)}, 0')
    k('v_lshlrev_b32 v1, 4, v0')
    for i in range(4):
        k(f'buffer_store_dwordx4 v[4:7], v1, s[12:15], 0 offen')
        if i < 3:
            k('v_add_u32 v1, 4096, v1')
    k('s_endpgm')


def cexp(k, l, arL, aiR, m, c, s):
    k(f'v_mul_f32 {m}, {arL}, {l}')
    k(f'v_mul_f32 {c}, {aiR}, {l}')
    k(f'v_exp_f32 {m}, {m}')
    k(f'v_fract_f32 {c}, {c}')
    k(f'v_sin_f32 {s}, {c}')
    k(f'v_cos_f32 {c}, {c}')


def role_kgen(k):
    k('v_and_b32 v1, 63, v0')
    k('v_lshrrev_b32 v2, 4, v1')
    k('v_lshrrev_b32 v3, 6, v0')
    k('v_lshlrev_b32 v4, 6, v3')
    k('v_lshl_add_u32 v4, v2, 3, v4')
    k('s_lshl_b32 s4, s3, 8')
    k('v_add_u32 v4, s4, v4')
    RAW = 8
    for a in range(6):
        for ks in range(2):
            k(f'global_load_dwordx2 {V(RAW + (a * 2 + ks) * 2, 2)}, v4, {S(8 + 2 * a, 2)} offset:{32 * ks}')
    k('s_lshr_b32 s5, s3, 1')
    k('s_lshl_b32 s5, s5, 2')
    k('s_load_dword s6, s[20:21], s5')
    vI = 5
    k(f'v_and_b32 {V(vI)}, 15, v0')
    k(f'v_cvt_f32_u32 {V(vI)}, {V(vI)}')
    LC = 32
    k(f'v_mov_b32 {V(LC)}, {V(vI)}')
    k(f'v_mul_f32 {V(LC + 1)}, 4.0, {V(vI)}')
    k(f'v_mul_f32 {V(LC + 2)}, {fhex(16.0)}, {V(vI)}')
    k(f'v_add_f32 {V(LC + 3)}, {fhex(256.0)}, {V(LC + 2)}')
    k(f'v_mul_f32 {V(LC + 4)}, {fhex(64.0)}, {V(vI)}')
    k(f'v_add_f32 {V(LC + 5)}, {fhex(1536.0)}, {V(LC + 4)}')
    k(f'v_add_f32 {V(LC + 4)}, {fhex(512.0)}, {V(LC + 4)}')
    k('s_waitcnt lgkmcnt(0)')
    k('s_bitcmp1_b32 s3, 0')
    k('s_cselect_b32 s7, 0, 16')
    k('s_lshl_b32 s6, s6, s7')
    k('s_and_b32 s6, s6, 0xffff0000')
    k('v_mov_b32 v6, s6')
    vdt = 7
    exp_accurate(k, V(vdt), 'v6', 'v38', 'v39', 22)
    round_bf16(k, V(vdt), V(vdt))
    P = 40
    T = 72
    for ks in range(2):
        for e in range(4):
            m = ks * 4 + e
            vals = []
            for a in range(6):
                src = V(RAW + (a * 2 + ks) * 2 + (e >> 1))
                dst = V(T + a)
                (unpack_hi if e & 1 else unpack_lo)(k, dst, src)
                vals.append(dst)
            are, aim, bre, bim, cre, cim = vals
            k(f'v_mul_f32 {are}, {V(vdt)}, {are}')
            k(f'v_mul_f32 {aim}, {V(vdt)}, {aim}')
            k(f'v_mul_f32 {bre}, {V(vdt)}, {bre}')
            k(f'v_mul_f32 {bim}, {V(vdt)}, {bim}')
            k(f'v_mul_f32 {V(P + 4 * m)}, {fhex(LOG2E)}, {are}')
            k(f'v_mul_f32 {V(P + 4 * m + 1)}, {fhex(INV2PI)}, {aim}')
            k(f'v_mul_f32 {V(P + 4 * m + 2)}, {cre}, {bre}')
            k(f'v_fma_f32 {V(P + 4 * m + 2)}, -{cim}, {bim}, {V(P + 4 * m + 2)}')
            k(f'v_mul_f32 {V(P + 4 * m + 3)}, {cre}, {bim}')
            k(f'v_fmac_f32 {V(P + 4 * m + 3)}, {cim}, {bre}')
    FR = 8
    ACC = 80
    for ks in range(2):
        for e in range(4):
            m = ks * 4 + e
            arL, aiR, wr, wi = (V(P + 4 * m + x) for x in range(4))
            for t in range(6):
                base = T + (t & 1) * 4
                mm, cc, ss, t1 = V(base), V(base + 1), V(base + 2), V(base + 3)
                cexp(k, V(LC + t), arL, aiR, mm, cc, ss)
                dst = V(FR + 4 * t + e)
                if t < 2:
                    k(f'v_mul_f32 {t1}, {wr}, {cc}')
                    k(f'v_fma_f32 {t1}, -{wi}, {ss}, {t1}')
                    k(f'v_mul_f32 {ss}, {wr}, {ss}')
                    k(f'v_fmac_f32 {ss}, {wi}, {cc}')
                    k(f'v_mul_f32 {t1}, {mm}, {t1}')
                    k(f'v_mul_f32 {ss}, {mm}, {ss}')
                    k(f'v_cvt_pk_bf16_f32 {dst}, {t1}, {ss}')
                else:
                    k(f'v_mul_f32 {cc}, {mm}, {cc}')
                    k(f'v_mul_f32 {ss}, {mm}, {ss}')
                    k(f'v_cvt_pk_bf16_f32 {dst}, {cc}, -{ss}')
        for t in range(4):
            cin = '0' if ks == 0 else V(ACC + 4 * t, 4)
            k(f'v_mfma_f32_16x16x32_bf16 {V(ACC + 4 * t, 4)}, {V(FR + 4 * (t >> 1), 4)}, {V(FR + 4 * (2 + t), 4)}, {cin}')
    k('v_and_b32 v4, 15, v0')
    k('v_lshlrev_b32 v4, 6, v4')
    k('v_lshl_add_u32 v4, v2, 4, v4')
    k('v_lshl_add_u32 v4, v3, 12, v4')
    GA = 40
    k('v_lshlrev_b32 v5, 3, v0')
    k('v_sub_u32 v5, 2047, v5')
    for e in range(8):
        k(f'v_subrev_u32 {V(GA + e)}, {e}, v5')
        k(f'v_cvt_f32_u32 {V(GA + e)}, {V(GA + e)}')
        round_bf16(k, V(GA + e), V(GA + e))
        k(f'v_cvt_u32_f32 {V(GA + e)}, {V(GA + e)}')
        k(f'v_max_u32 v6, 512, {V(GA + e)}')
        k(f'v_subrev_u32 v6, 512, v6')
        k(f'v_lshrrev_b32 v6, 2, v6')
        k(f'v_min_u32 {V(GA + e)}, 512, {V(GA + e)}')
        k(f'v_add_u32 {V(GA + e)}, {V(GA + e)}, v6')
        k(f'v_lshlrev_b32 {V(GA + e)}, 1, {V(GA + e)}')
    for t in range(4):
        k(f'ds_write_b128 v4, {V(ACC + 4 * t, 4)} offset:{1024 * t}')
    k('s_waitcnt lgkmcnt(0)')
    k('s_barrier')
    k('v_lshlrev_b32 v4, 4, v0')
    for w in range(4):
        k(f'ds_read_b128 {V(8 + 4 * w, 4)}, v4 offset:{4096 * w}')
    for e in range(4):
        k(f'v_add_f32 {V(8 + e)}, {V(8 + e)}, {V(12 + e)}')
        k(f'v_add_f32 {V(16 + e)}, {V(16 + e)}, {V(20 + e)}')
    for e in range(4):
        k(f'v_add_f32 {V(8 + e)}, {V(8 + e)}, {V(16 + e)}')
    k('v_cvt_pk_bf16_f32 v12, v8, v9')
    k('v_cvt_pk_bf16_f32 v13, v10, v11')
    k('v_lshlrev_b32 v4, 3, v0')
    k('ds_write_b64 v4, v[12:13] offset:16384')
    k('s_waitcnt lgkmcnt(0)')
    k('s_barrier')
    for e in range(4):
        k(f'v_mov_b32 {V(20 + e)}, 0')
    for e in range(8):
        k(f'ds_read_u16 {V(24 + e)}, {V(GA + e)} offset:16384')
    for e in range(4):
        k(f'v_lshl_or_b32 {V(16 + e)}, {V(24 + 2 * e + 1)}, 16, {V(24 + 2 * e)}')
    k(f's_mul_i32 s4, s3, {GSTRIDE}')
    k('v_lshlrev_b32 v4, 4, v0')
    k('buffer_store_dwordx4 v[16:19], v4, s[24:27], s4 offen')
    k('v_cmp_gt_u32 vcc, 2, v0')
    k('s_and_saveexec_b64 s[28:29], vcc')
    k('v_add_u32 v4, 4096, v4')
    k('buffer_store_dwordx4 v[20:23], v4, s[24:27], s4 offen')
    k('s_endpgm')


def gen_k0():
    k = Kernel('k0_prep_kernel')
    k(f's_cmp_ge_u32 s2, {K0_GRID}')
    k('s_cbranch_scc1 k0_exit')
    k(f's_cmp_ge_u32 s2, {B_KG}')
    k('s_cbranch_scc1 k0_kgen')
    load_ptr(k, 30, 'ws')
    k(f's_cmp_ge_u32 s2, {B_Z}')
    k('s_cbranch_scc1 k0_zero')
    k(f's_cmp_ge_u32 s2, {B_T5}')
    k('s_cbranch_scc1 k0_t5')
    k(f's_cmp_ge_u32 s2, {B_T1}')
    k('s_cbranch_scc1 k0_t1')
    load_ptr(k, 32, 'w_mod')
    load_ptr(k, 34, 'c')
    k('s_waitcnt lgkmcnt(0)')
    k(f's_sub_u32 s3, s2, {B_T2}')
    srd(k, 8, 32, 0, 640 * 3840 * 2)
    srd_ws(k, 12, 30, 'MODP')
    srd(k, 16, 34, 0, 640 * 2 + 4)
    role_mod(k)
    k.section('k0_t1')
    load_ptr(k, 32, 'x')
    k('s_waitcnt lgkmcnt(0)')
    k(f's_sub_u32 s3, s2, {B_T1}')
    srd(k, 8, 32, 0, L * D * 2)
    srd_ws(k, 12, 30, 'XI')
    srd_ws(k, 16, 30, 'ST1')
    transpose_tile(k, 't1')
    k.section('k0_t5')
    load_ptr(k, 32, 'w_out')
    k('s_waitcnt lgkmcnt(0)')
    k(f's_sub_u32 s3, s2, {B_T5}')
    srd(k, 8, 32, 0, FH * D * 2)
    srd_ws(k, 12, 30, 'WOF')
    transpose_tile(k, 't5')
    k.section('k0_zero')
    k('s_waitcnt lgkmcnt(0)')
    srd_ws(k, 12, 30, 'ST2')
    role_zero(k)
    k.section('k0_kgen')
    k(f's_load_dwordx8 s[8:15], s[0:1], {KA["a_re"]}')
    k(f's_load_dwordx4 s[16:19], s[0:1], {KA["c_re"]}')
    load_ptr(k, 20, 'log_dt')
    load_ptr(k, 30, 'ws')
    k('s_waitcnt lgkmcnt(0)')
    k(f's_sub_u32 s3, s2, {B_KG}')
    srd_ws(k, 24, 30, 'G')
    role_kgen(k)
    k.section('k0_exit')
    k('s_endpgm')
    return k, (K0_GRID, 256, K0_LDS)
```

```python
import sys, importlib
from gen_common import *
import gen_k0

def build(kernels, path):
    ref = open('adaLN_cond__ssm_conv_s4__mixer_gmlp__prompt.s.ref').read().split('\n')
    hdr = [l for l in ref if l.startswith(';') and '@launch' not in l and 'Override' not in l and 'grid=ceil' not in l]
    out = list(hdr)
    for k, (g, b, lds) in kernels:
        out.append(f'; @launch kernel={k.name} grid=({g},1,1) block=({b},1,1) lds={lds}')
    out.append('.amdgcn_target "amdgcn-amd-amdhsa--gfx950"')
    out.append('.text')
    seen = []
    for k, _ in kernels:
        if k.name in seen: continue
        seen.append(k.name)
        out.append(k.text())
    out.append('.section .rodata,"a"')
    seen = []
    for k, _ in kernels:
        if k.name in seen: continue
        seen.append(k.name)
        out.append(k.descriptor())
        print(k.name, 'vgpr', k.vtop, 'agpr', k.atop, 'sgpr', k.stop, 'insns', len(k.items), file=sys.stderr)
    open(path, 'w').write('\n'.join(out) + '\n')

if __name__ == '__main__':
    which = sys.argv[1] if len(sys.argv) > 1 else 'all'
    path = sys.argv[2] if len(sys.argv) > 2 else 'adaLN_cond__ssm_conv_s4__mixer_gmlp__prompt.s'
    ks = [gen_k0.gen_k0()]
    for name in ('k1', 'k2', 'k3', 'k4'):
        try:
            m = importlib.import_module('gen_' + name)
        except ImportError:
            break
        ks.append(getattr(m, 'gen_' + name)())
    build(ks, path)
```

```python
import os, sys
os.environ['DIAG'] = '1'
from gen_common import *
import gen
def mk(name, body_fn, nthreads, grid=256, lds=0, reps=3):
    k = Kernel(name)
    k(f's_cmp_ge_u32 s2, {grid}')
    k(f's_cbranch_scc1 {name}_exit')
    for i in range(1, 64):
        k(f'v_mov_b32 v{i}, 1.0')
    k('s_mov_b32 s10, 0')
    k('s_barrier')
    k.loop_begin(f'{name}_loop')
    k('s_memtime s[20:21]')
    k('s_waitcnt lgkmcnt(0)')
    body_fn(k)
    k('s_barrier')
    k('s_memtime s[22:23]')
    k('s_waitcnt lgkmcnt(0)')
    k('s_sub_u32 s24, s22, s20')
    k('s_cmp_eq_u32 s10, 0')
    k('s_cselect_b32 s84, s24, s84')
    k('s_cmp_eq_u32 s10, 1')
    k('s_cselect_b32 s86, s24, s86')
    k('s_cmp_eq_u32 s10, 2')
    k('s_cselect_b32 s88, s24, s88')
    k('s_add_u32 s10, s10, 1')
    k(f's_cmp_lt_u32 s10, {reps}')
    k(f's_cbranch_scc1 {name}_loop')
    k.loop_end()
    k('s_mov_b32 s85, 0'); k('s_mov_b32 s87, 0'); k('s_mov_b32 s89, 0')
    stamp_flush(k, 3, 5)
    k('s_endpgm')
    k.section(f'{name}_exit')
    k('s_endpgm')
    return k, (grid, nthreads, lds)

N = 2000
def b_fma_indep(k):
    for i in range(N):
        r = 1 + (i % 32)
        k(f'v_fma_f32 v{r}, v{r}, v40, v41')
def b_add_indep(k):
    for i in range(N):
        r = 1 + (i % 32)
        k(f'v_add_f32 v{r}, v{r}, v40')
def b_fma_dep(k):
    for i in range(N):
        k(f'v_fma_f32 v1, v1, v40, v41')
def b_fma_dep2(k):
    for i in range(N):
        r = 1 + (i % 2)
        k(f'v_fma_f32 v{r}, v{r}, v40, v41')
def b_exp(k):
    for i in range(N):
        r = 1 + (i % 32)
        k(f'v_exp_f32 v{r}, v{r}')
def b_pk(k):
    for i in range(N):
        r = 2 + 2 * (i % 16)
        k(f'v_pk_mul_f32 v[{r}:{r+1}], v[{r}:{r+1}], v[40:41]')
def b_cvt(k):
    for i in range(N):
        r = 1 + (i % 32)
        k(f'v_cvt_pk_bf16_f32 v{r}, v{r}, v40')
ks = []
for nm, fn in (('fma', b_fma_indep), ('add', b_add_indep), ('dep', b_fma_dep), ('dep2', b_fma_dep2), ('exp', b_exp), ('pk', b_pk), ('cvt', b_cvt)):
    for nt in (256, 512, 1024):
        ks.append(mk(f'k{nm}_{nt}_kernel', fn, nt))
gen.build(ks, 'mb1.s')
```
